```python
import torch

def _softmax(x, axis=-1):
    return torch.softmax(x, dim=axis)
def _gelu(x):
    return torch.nn.functional.gelu(x, approximate="tanh")
def _silu(x):
    return torch.nn.functional.silu(x)
def _sigmoid(x):
    return torch.sigmoid(x)
def _layernorm(x, axis=-1, eps=1e-5):
    m = x.mean(dim=axis, keepdim=True)
    v = x.var(dim=axis, keepdim=True, unbiased=False)
    return (x - m) / torch.sqrt(v + eps)
def _scatter_add(tgt, idx, src, axis=0):
    return tgt.clone().index_add_(axis, idx, src)
def _segment_sum(src, seg, n):
    out = torch.zeros((n,) + src.shape[1:], dtype=src.dtype)
    return out.index_add_(0, seg, src)
def _pad(x, pw):
    flat = tuple(v for pair in reversed(pw) for v in pair)
    return torch.nn.functional.pad(x, flat)

kernel_name = 'sequential_preLN__grouped_kv_mqa__glu_gated_swiglu__prompt'

def setup_inputs():

    _w = (lambda a: (lambda t: t.to(torch.bfloat16) if t.is_floating_point() else t)(torch.as_tensor(a)))
    def _A_setup():
        B, S, D, H = 1, 2048, 512, 32
        Dh = D // H
        return {
            "x": _w((lambda *s: torch.randn(*s, dtype=torch.bfloat16) * 0.05)(B, S, D)),
            "wq": _w((lambda *s: torch.randn(*s, dtype=torch.bfloat16) * 0.05)(D, H * Dh)),
            "wk": _w((lambda *s: torch.randn(*s, dtype=torch.bfloat16) * 0.05)(D, Dh)),
            "wv": _w((lambda *s: torch.randn(*s, dtype=torch.bfloat16) * 0.05)(D, Dh)),
            "wo": _w((lambda *s: torch.randn(*s, dtype=torch.bfloat16) * 0.05)(H * Dh, D)),
        }
    _A_in = _A_setup()

    def _B_setup():
        B, S, D, F = 1, 2048, 512, 1376
        return {
            "x": _w((lambda *s: torch.randn(*s, dtype=torch.bfloat16) * 0.05)(B, S, D)),
            "w1": _w((lambda *s: torch.randn(*s, dtype=torch.bfloat16) * 0.4)(D, F) * (2.0 / D) ** 0.5),
            "w3": _w((lambda *s: torch.randn(*s, dtype=torch.bfloat16) * 0.4)(D, F) * (2.0 / D) ** 0.5),
            "w2": _w((lambda *s: torch.randn(*s, dtype=torch.bfloat16) * 0.4)(F, D) * (2.0 / F) ** 0.5),
        }
    _B_in = _B_setup()

    return {
        "A_x": _A_in["x"],
        "A_wq": _A_in["wq"],
        "A_wk": _A_in["wk"],
        "A_wv": _A_in["wv"],
        "A_wo": _A_in["wo"],
        "B_x": _B_in["x"],
        "B_w1": _B_in["w1"],
        "B_w3": _B_in["w3"],
        "B_w2": _B_in["w2"],
    }

def reference(A_x, A_wq, A_wk, A_wv, A_wo, B_x, B_w1, B_w3, B_w2):
    def _A_ref(x, wq, wk, wv, wo):
        B, S, D = x.shape
        H = 32
        Dh = D // H
        q = (lambda x, *d: x.permute(*d))((x @ wq).reshape(B, S, H, Dh), 0, 2, 1, 3)
        k = x @ wk
        v = x @ wv
        scores = torch.einsum("bhqd,bkd->bhqk", q, k) * (Dh ** -0.5)
        p = _softmax(scores, axis=-1)
        o = torch.einsum("bhqk,bkd->bhqd", p, v)
        return (lambda x, *d: x.permute(*d))(o, 0, 2, 1, 3).reshape(B, S, H * Dh) @ wo

    def _B_ref(x, w1, w3, w2):
        gate = torch.einsum("bsd,df->bsf", x, w1)
        up = torch.einsum("bsd,df->bsf", x, w3)
        h = _silu(gate) * up
        out = torch.einsum("bsf,fd->bsd", h, w2)
        return out

    x = A_x
    h = x + _A_ref(_layernorm(x, axis=-1), A_wq, A_wk, A_wv, A_wo)
    h2 = h + _B_ref(_layernorm(h, axis=-1), B_w1, B_w3, B_w2)
    return h2
```

```python
import re

def _regs(tok):
    tok = tok.strip()
    tok = tok.lstrip('-')
    m = re.match(r'^abs\((.*)\)$', tok)
    if m: tok = m.group(1)
    m = re.match(r'^([vsa])\[(\d+):(\d+)\]$', tok)
    if m:
        return [(m.group(1), i) for i in range(int(m.group(2)), int(m.group(3)) + 1)]
    m = re.match(r'^([vsa])(\d+)$', tok)
    if m:
        return [(m.group(1), int(m.group(2)))]
    if tok in ('vcc',): return [('s', 106), ('s', 107)]
    if tok in ('vcc_lo',): return [('s', 106)]
    if tok in ('vcc_hi',): return [('s', 107)]
    if tok in ('exec',): return [('s', 126), ('s', 127)]
    if tok in ('m0',): return [('s', 124)]
    return []

TRANS = ('v_exp_f32', 'v_log_f32', 'v_rcp_f32', 'v_rsq_f32', 'v_sqrt_f32', 'v_sin_f32', 'v_cos_f32')

class Ins:
    __slots__ = ('text', 'op', 'kind', 'w', 'r', 'passes', 'states', 'mfma_c')
    def __init__(self, text):
        self.text = text
        t = text.split(';')[0].strip()
        self.w, self.r = [], []
        self.passes = 0
        self.states = 1
        self.mfma_c = []
        if not t or t.endswith(':') or t.startswith('.'):
            self.op = ''; self.kind = 'label' if t.endswith(':') else 'none'; self.states = 0
            return
        parts = t.split(None, 1)
        op = parts[0]; self.op = op
        ops = []
        if len(parts) > 1:
            ops = [o.strip() for o in re.split(r',\s*(?![^\[]*\])', parts[1])]
        if op.startswith('v_mfma'):
            self.kind = 'mfma'
            self.w = _regs(ops[0]); self.r = _regs(ops[1]) + _regs(ops[2]) + _regs(ops[3])
            self.mfma_c = _regs(ops[3])
            self.passes = 8 if '32x32x16' in op else 4
        elif op.startswith('v_cmp'):
            self.kind = 'valu'
            self.w = _regs(ops[0]); self.r = sum((_regs(o) for o in ops[1:]), [])
        elif op.startswith('v_readfirstlane') or op.startswith('v_readlane'):
            self.kind = 'valu'
            self.w = _regs(ops[0]); self.r = sum((_regs(o) for o in ops[1:]), [])
        elif op.startswith('v_permlane32_swap') or op.startswith('v_permlane16_swap'):
            self.kind = 'valu'
            self.w = _regs(ops[0]) + _regs(ops[1]); self.r = list(self.w)
        elif op.startswith('v_'):
            self.kind = 'valu'
            self.w = _regs(ops[0]); self.r = sum((_regs(o) for o in ops[1:]), [])
            if op.startswith('v_fmac') or op.startswith('v_dot2c'):
                self.r += self.w
            if op.startswith('v_cndmask') and len(ops) == 3:
                self.r += _regs('vcc')
            if '_co_' in op:
                self.w += _regs(ops[1])
        elif op.startswith('ds_read') or op.startswith('ds_bpermute') or op.startswith('ds_swizzle'):
            self.kind = 'ds'
            mo = re.search(r'offset:(\d+)', t)
            if mo and int(mo.group(1)) > 65535: raise ValueError('DS offset too large: ' + text)
            self.w = _regs(ops[0]); self.r = sum((_regs(o.split()[0]) for o in ops[1:]), [])
        elif op.startswith('ds_'):
            self.kind = 'ds'
            mo = re.search(r'offset:(\d+)', t)
            if mo and int(mo.group(1)) > 65535: raise ValueError('DS offset too large: ' + text)
            self.r = sum((_regs(o.split()[0]) for o in ops), [])
        elif op.startswith('buffer_load') or op.startswith('global_load'):
            self.kind = 'vmem'
            mo = re.search(r'offset:(\d+)', t)
            if mo and int(mo.group(1)) > 4095: raise ValueError('MUBUF offset too large: ' + text)
            if ' lds' in t:
                self.r = sum((_regs(o.split()[0]) for o in ops), [])
            else:
                self.w = _regs(ops[0]); self.r = sum((_regs(o.split()[0]) for o in ops[1:]), [])
        elif op.startswith('buffer_') or op.startswith('global_'):
            self.kind = 'vmem'
            mo = re.search(r'offset:(\d+)', t)
            if mo and int(mo.group(1)) > 4095: raise ValueError('MUBUF offset too large: ' + text)
            self.r = sum((_regs(o.split()[0]) for o in ops), [])
        elif op == 's_nop':
            self.kind = 'salu'; self.states = int(ops[0], 0) + 1
        elif op.startswith('s_'):
            self.kind = 'salu'
            if op.startswith('s_cmp') or op.startswith('s_cbranch') or op.startswith('s_branch') or op in ('s_waitcnt', 's_barrier', 's_endpgm', 's_setprio', 's_sleep'):
                self.r = sum((_regs(o) for o in ops), [])
            else:
                self.w = _regs(ops[0]) if ops else []
                self.r = sum((_regs(o) for o in ops[1:]), [])
        else:
            raise ValueError('unknown op ' + text)

class Kern:
    def __init__(self):
        self.ins = []
    def __call__(self, text):
        for line in text.strip('\n').split('\n'):
            line = line.strip()
            if not line or line.startswith(';'):
                continue
            self.ins.append(Ins(line))
    def comment(self, s):
        self.ins.append(Ins('; ' + s)); self.ins[-1].kind = 'none'

    def finalize(self):
        out = []
        valu_w = {}
        trans_w = {}
        mfma_w = {}
        mfma_cr = {}
        store_r = {}
        exec_valu = [99]
        def age_all(n):
            for d in (valu_w, trans_w, store_r):
                for k in list(d):
                    d[k] += n
                    if d[k] > 24: del d[k]
            for d in (mfma_w, mfma_cr):
                for k in list(d):
                    d[k] = (d[k][0], d[k][1] + n, d[k][2] if len(d[k]) > 2 else None)
                    if d[k][1] > 24: del d[k]
            exec_valu[0] += n
        for I in self.ins:
            if I.kind in ('none',):
                out.append(I); continue
            if I.kind == 'label' or I.op.startswith('s_cbranch') or I.op.startswith('s_branch'):
                need = 0
                for k, v in mfma_w.items(): need = max(need, (20 if v[0] == 16 else 12 if v[0] == 8 else 8) - v[1])
                if valu_w or trans_w or store_r or mfma_cr: need = max(need, 4)
                while need > 0:
                    n = min(need, 8); out.append(Ins('s_nop %d' % (n - 1))); age_all(n); need -= n
                out.append(I)
                if I.kind != 'label': age_all(1)
                continue
            need = 0
            def req(age, n):
                nonlocal need
                need = max(need, n - age)
            rs = I.r; ws = I.w
            if I.kind == 'mfma':
                for x in rs:
                    if x in valu_w: req(valu_w[x], 2)
                    if x in mfma_w:
                        p, a, dt = mfma_w[x]
                        if x in I.mfma_c and dt == tuple(I.w) and tuple(I.mfma_c) == tuple(I.w) and not (x in _regs_ab(I)):
                            pass
                        elif x in I.mfma_c and not (x in _regs_ab(I)):
                            req(a, 10 if p == 8 else 6)
                        else:
                            req(a, 12 if p == 8 else 8)
                for x in ws:
                    if x in mfma_w:
                        p, a, dt = mfma_w[x]
                        if not (dt == tuple(I.w) and tuple(I.mfma_c) == tuple(I.w)):
                            req(a, 12 if p == 8 else 8)
                    if x in mfma_cr and x not in I.mfma_c:
                        pass
                req(exec_valu[0], 4)
            else:
                for x in rs + ws:
                    if x in mfma_w:
                        p, a, dt = mfma_w[x]
                        req(a, 12 if p == 8 else 8)
                for x in ws:
                    if x in mfma_cr:
                        p, a = mfma_cr[x][0], mfma_cr[x][1]
                        req(a, 7 if p == 8 else 3)
                    if x in store_r and I.kind in ('valu',): req(store_r[x], 2)
                    if x in store_r and I.kind in ('vmem', 'ds'): req(store_r[x], 1)
                if I.kind == 'valu':
                    for x in rs:
                        if x in trans_w and I.op not in TRANS: req(trans_w[x], 1)
                        if x[0] == 's' and x in valu_w: req(valu_w[x], 4 if I.op.startswith('v_readlane') else 2)
                        if x[0] == 'v' and x in valu_w:
                            if I.op.startswith('v_readfirstlane') or I.op.startswith('v_readlane'): req(valu_w[x], 1)
                            if I.op.startswith('v_permlane') or 'dpp' in I.text or 'row_' in I.text or 'quad_perm' in I.text: req(valu_w[x], 2)
                if I.kind == 'vmem':
                    for x in rs:
                        if x[0] == 's' and x in valu_w: req(valu_w[x], 5)
                if I.kind == 'salu':
                    for x in rs:
                        if x[0] == 's' and x in valu_w: req(valu_w[x], 4)
            while need > 0:
                n = min(need, 8); out.append(Ins('s_nop %d' % (n - 1))); age_all(n); need -= n
            out.append(I)
            age_all(I.states)
            if I.kind == 'valu':
                for x in ws:
                    valu_w[x] = 0
                    if I.op in TRANS: trans_w[x] = 0
                    else: trans_w.pop(x, None)
                    mfma_w.pop(x, None)
                if ('s', 126) in ws: exec_valu[0] = 0
            elif I.kind == 'mfma':
                for x in ws:
                    mfma_w[x] = (I.passes, 0, tuple(I.w)); valu_w.pop(x, None)
                for x in I.mfma_c:
                    mfma_cr[x] = (I.passes, 0, None)
            elif I.kind in ('ds', 'vmem'):
                for x in ws:
                    valu_w.pop(x, None); mfma_w.pop(x, None); trans_w.pop(x, None)
                if I.kind == 'vmem' and ('store' in I.op) and ('x4' in I.op or 'x3' in I.op):
                    for x in rs:
                        if x[0] == 'v': store_r[x] = 0
            elif I.kind == 'salu':
                for x in ws:
                    valu_w.pop(x, None)
            if I.op.startswith('s_cbranch') or I.op.startswith('s_branch'):
                pass
        return '\n'.join(('    ' + i.text) if i.kind not in ('label',) else i.text for i in out)

def _regs_ab(I):
    return set(I.r) - set(I.mfma_c) | (set(I.r[:len(I.r) - len(I.mfma_c)]))
```

```python
import sys, math
sys.path.insert(0, 'gen')
from asmdsl import Kern

WS_Q  = 0x000000
WS_K  = 0x200000
WS_VT = 0x210000
WS_O  = 0x300000
WS_H  = 0x500000
WS_G  = 0x700000
WS_BYTES = 0x1000000
QSCALE = 0.25 * math.log2(math.e)

def f32bits(x):
    import struct
    return struct.unpack('<I', struct.pack('<f', x))[0]

def srd(k, d, slot, nbytes, off=0):
    k(f's_load_dwordx2 s[{d}:{d+1}], s[0:1], {slot*8}')

def srd_fin(k, d, nbytes):
    k(f's_mov_b32 s{d+2}, {nbytes}')
    k(f's_mov_b32 s{d+3}, 0x00020000')

def ln_gemm_prologue(k, AV, sX):
    k('s_mov_b32 s30, 0x3f803f80')
    for i in range(4):
        k(f'v_mov_b32 v{2+i}, 0')
        k(f'v_mov_b32 v{6+i}, 0')
    for s in range(32):
        k(f's_waitcnt vmcnt({31-s})')
        for j in range(4):
            r = AV + 4*s + j
            k(f'v_dot2_f32_bf16 v{2+j}, v{r}, s30, v{2+j}')
            k(f'v_dot2_f32_bf16 v{6+j}, v{r}, v{r}, v{6+j}')
    k('''
    v_add_f32 v2, v2, v3
    v_add_f32 v4, v4, v5
    v_add_f32 v6, v6, v7
    v_add_f32 v8, v8, v9
    v_add_f32 v2, v2, v4
    v_add_f32 v6, v6, v8
    v_mov_b32 v3, v2
    v_mov_b32 v7, v6
    v_permlane32_swap_b32 v2, v3
    v_permlane32_swap_b32 v6, v7
    v_add_f32 v2, v2, v3
    v_add_f32 v6, v6, v7
    v_mul_f32 v2, 0x3b000000, v2
    v_mul_f32 v6, 0x3b000000, v6
    v_mul_f32 v3, v2, v2
    v_sub_f32 v6, v6, v3
    v_max_f32 v6, 0, v6
    v_add_f32 v6, 0x3727c5ac, v6
    v_rsq_f32 v6, v6
    ''')
    k('v_mul_f32 v7, v2, v6')
    k('v_sub_f32 v7, 0, v7')
    for r in range(AV, AV+128):
        k(f'v_lshlrev_b32 v2, 16, v{r}')
        k(f'v_and_b32 v3, 0xffff0000, v{r}')
        k(f'v_fma_f32 v2, v2, v6, v7')
        k(f'v_fma_f32 v3, v3, v6, v7')
        k(f'v_cvt_pk_bf16_f32 v{r}, v2, v3')

def gen_k1():
    k = Kern()
    AV = 128
    k('''
    s_cmp_ge_u32 s2, 272
    s_cbranch_scc1 L1_end
    s_load_dwordx2 s[8:9], s[0:1], 0
    s_load_dwordx2 s[12:13], s[0:1], 8
    s_load_dwordx2 s[16:17], s[0:1], 16
    s_load_dwordx2 s[24:25], s[0:1], 24
    s_load_dwordx2 s[20:21], s[0:1], 88
    s_and_b32 s4, s2, 15
    s_lshr_b32 s5, s2, 4
    v_and_b32 v1, 63, v0
    v_lshrrev_b32 v2, 6, v0
    v_and_b32 v3, 31, v0
    v_bfe_u32 v4, v0, 5, 1
    s_lshl_b32 s6, s4, 7
    v_lshlrev_b32 v5, 5, v2
    v_add_u32 v5, v5, v3
    v_add_u32 v5, s6, v5
    v_mov_b32 v10, v5
    v_mov_b32 v11, v4
    v_lshlrev_b32 v6, 10, v5
    v_lshl_add_u32 v6, v4, 4, v6
    s_waitcnt lgkmcnt(0)
    ''')
    srd_fin(k, 8, 2048*1024); srd_fin(k, 12, 512*1024); srd_fin(k, 16, 512*32); srd_fin(k, 24, 512*32); srd_fin(k, 20, WS_BYTES)
    for s in range(32):
        k(f'buffer_load_dwordx4 v[{AV+4*s}:{AV+4*s+3}], v6, s[8:11], 0 offen offset:{s*32}')
    k('''
    v_lshrrev_b32 v7, 2, v0
    v_and_b32 v8, 3, v0
    v_lshlrev_b32 v9, 4, v0
    s_cmp_eq_u32 s5, 16
    s_cbranch_scc1 L1_kv
    v_lshlrev_b32 v12, 10, v7
    v_lshl_add_u32 v12, v8, 4, v12
    s_lshl_b32 s7, s5, 6
    v_add_u32 v12, s7, v12
    ''')
    for i in range(8):
        k(f'buffer_load_dwordx4 v[{32+4*i}:{35+4*i}], v12, s[12:15], 0 offen')
        if i < 7: k('v_add_u32 v12, 0x10000, v12')
    k('s_branch L1_bstore')
    k('L1_kv:')
    k('''
    v_lshlrev_b32 v12, 5, v7
    v_and_b32 v13, 1, v8
    v_lshl_add_u32 v12, v13, 4, v12
    v_cmp_gt_u32 vcc, 2, v8
    s_and_saveexec_b64 s[28:29], vcc
    ''')
    for i in range(8):
        k(f's_mov_b32 s7, {i*2048}')
        k(f'buffer_load_dwordx4 v[{32+4*i}:{35+4*i}], v12, s[16:19], s7 offen')
    k('s_andn2_b64 exec, s[28:29], exec')
    for i in range(8):
        k(f's_mov_b32 s7, {i*2048}')
        k(f'buffer_load_dwordx4 v[{32+4*i}:{35+4*i}], v12, s[24:27], s7 offen')
    k('s_mov_b64 exec, s[28:29]')
    k('L1_bstore:')
    for i in range(8):
        k(f's_waitcnt vmcnt({7-i})')
        k(f'ds_write_b128 v9, v[{32+4*i}:{35+4*i}] offset:{i*4096}')
    k('s_waitcnt vmcnt(0)')
    k('s_mov_b32 s30, 0x3f803f80')
    for i in range(4):
        k(f'v_mov_b32 v{2+i}, 0')
        k(f'v_mov_b32 v{6+i}, 0')
    ln_body(k, AV)
    k('''
    v_and_b32 v1, 63, v0
    v_lshrrev_b32 v2, 5, v1
    v_bfe_u32 v3, v1, 2, 2
    v_lshl_add_u32 v2, v2, 3, v3
    v_lshlrev_b32 v2, 6, v2
    v_bfe_u32 v3, v1, 4, 1
    v_lshl_add_u32 v2, v3, 5, v2
    v_and_b32 v3, 3, v1
    v_lshl_add_u32 v12, v3, 3, v2
    s_waitcnt lgkmcnt(0)
    s_barrier
    ''')
    gemm_loop(k, AV, 12, acc=16, bbuf=32, nsteps=32)
    k('s_cmp_eq_u32 s5, 16')
    k('s_cbranch_scc1 L1_epi_kv')
    k(f's_mov_b32 s30, 0x{f32bits(QSCALE):08x}')
    k('''
    v_lshlrev_b32 v6, 10, v10
    v_lshl_add_u32 v6, v11, 3, v6
    s_lshl_b32 s7, s5, 6
    v_add_u32 v6, s7, v6
    ''')
    for q in range(4):
        for e in range(4):
            k(f'v_mul_f32 v{16+4*q+e}, s30, v{16+4*q+e}')
        k(f'v_cvt_pk_bf16_f32 v{2}, v{16+4*q}, v{17+4*q}')
        k(f'v_cvt_pk_bf16_f32 v{3}, v{18+4*q}, v{19+4*q}')
        k(f'buffer_store_dwordx2 v[2:3], v6, s[20:23], 0 offen offset:{WS_Q + q*16}')
        k('s_nop 1')
    k('s_branch L1_end')
    k('L1_epi_kv:')
    k('''
    v_lshlrev_b32 v6, 5, v10
    v_lshl_add_u32 v6, v11, 3, v6
    ''')
    k(f'v_add_u32 v6, 0x{WS_K:x}, v6')
    for q in range(2):
        k(f'v_cvt_pk_bf16_f32 v{2}, v{16+4*q}, v{17+4*q}')
        k(f'v_cvt_pk_bf16_f32 v{3}, v{18+4*q}, v{19+4*q}')
        k(f'buffer_store_dwordx2 v[2:3], v6, s[20:23], 0 offen offset:{q*16}')
        k('s_nop 1')
    k('''
    v_lshrrev_b32 v6, 4, v10
    v_lshlrev_b32 v6, 10, v6
    v_bfe_u32 v7, v10, 2, 1
    v_lshl_add_u32 v6, v7, 9, v6
    v_and_b32 v7, 3, v10
    v_lshl_add_u32 v6, v7, 1, v6
    v_bfe_u32 v7, v10, 3, 1
    v_lshl_add_u32 v6, v7, 3, v6
    v_lshl_add_u32 v6, v11, 6, v6
    ''')
    k(f'v_add_u32 v6, 0x{WS_VT:x}, v6')
    for q in range(2):
        for e in range(4):
            k(f'v_cvt_pk_bf16_f32 v2, v{24+4*q+e}, v{24+4*q+e}')
            k(f'buffer_store_short v2, v6, s[20:23], 0 offen offset:{(8*q+e)*16}')
    k('''
    v_lshrrev_b32 v6, 5, v0
    s_lshl_b32 s7, s4, 3
    v_add_u32 v6, s7, v6
    v_lshlrev_b32 v6, 10, v6
    v_and_b32 v7, 15, v0
    v_add_u32 v8, 16, v7
    v_bfe_u32 v9, v0, 4, 1
    v_lshl_add_u32 v8, v9, 5, v8
    v_lshl_add_u32 v6, v8, 4, v6
    ''')
    k(f'v_add_u32 v6, 0x{WS_VT:x}, v6')
    k('''
    v_mov_b32 v2, 0
    v_mov_b32 v3, 0x3f803f80
    v_cmp_eq_u32 vcc, 0, v7
    v_cndmask_b32 v2, v2, v3, vcc
    v_mov_b32 v3, v2
    v_mov_b32 v4, v2
    v_mov_b32 v5, v2
    buffer_store_dwordx4 v[2:5], v6, s[20:23], 0 offen
    ''')
    k('L1_end:')
    k('s_endpgm')
    return k

def ln_body(k, AV):
    for s in range(32):
        for j in range(4):
            r = AV + 4*s + j
            k(f'v_dot2_f32_bf16 v{2+j}, v{r}, s30, v{2+j}')
            k(f'v_dot2_f32_bf16 v{6+j}, v{r}, v{r}, v{6+j}')
    k('''
    v_add_f32 v2, v2, v3
    v_add_f32 v4, v4, v5
    v_add_f32 v6, v6, v7
    v_add_f32 v8, v8, v9
    v_add_f32 v2, v2, v4
    v_add_f32 v6, v6, v8
    v_mov_b32 v3, v2
    v_mov_b32 v7, v6
    v_permlane32_swap_b32 v2, v3
    v_permlane32_swap_b32 v6, v7
    v_add_f32 v2, v2, v3
    v_add_f32 v6, v6, v7
    v_mul_f32 v2, 0x3b000000, v2
    v_mul_f32 v6, 0x3b000000, v6
    v_mul_f32 v3, v2, v2
    v_sub_f32 v6, v6, v3
    v_max_f32 v6, 0, v6
    v_add_f32 v6, 0x3727c5ac, v6
    v_rsq_f32 v6, v6
    ''')
    k('v_mul_f32 v7, v2, v6')
    k('v_sub_f32 v7, 0, v7')
    for r in range(AV, AV+128):
        k(f'v_lshlrev_b32 v2, 16, v{r}')
        k(f'v_and_b32 v3, 0xffff0000, v{r}')
        k(f'v_fma_f32 v2, v2, v6, v7')
        k(f'v_fma_f32 v3, v3, v6, v7')
        k(f'v_cvt_pk_bf16_f32 v{r}, v2, v3')

def gemm_loop(k, AV, vaddr, acc, bbuf, nsteps, lds_base=0):
    W = 4
    def rd(s):
        b = bbuf + 4*(s % W)
        k(f'ds_read_b64_tr_b16 v[{b}:{b+1}], v{vaddr} offset:{lds_base + s*1024}')
        k(f'ds_read_b64_tr_b16 v[{b+2}:{b+3}], v{vaddr} offset:{lds_base + s*1024 + 256}')
    for s in range(min(W-1, nsteps)): rd(s)
    for s in range(nsteps):
        if s + W - 1 < nsteps: rd(s + W - 1)
        outstanding = 2 * (min(s + W - 1, nsteps - 1) - s)
        k(f's_waitcnt lgkmcnt({outstanding})')
        b = bbuf + 4*(s % W)
        c = f'v[{acc}:{acc+15}]' if s > 0 else '0'
        k(f'v_mfma_f32_32x32x16_bf16 v[{acc}:{acc+15}], v[{b}:{b+3}], v[{AV+4*s}:{AV+4*s+3}], {c}')

def gen_k2():
    k = Kern()
    k('''
    s_cmp_ge_u32 s2, 512
    s_cbranch_scc1 L2_end
    s_load_dwordx2 s[20:21], s[0:1], 88
    v_and_b32 v3, 31, v0
    v_bfe_u32 v74, v0, 5, 1
    v_lshrrev_b32 v75, 6, v0
    s_lshl_b32 s4, s2, 2
    v_add_u32 v75, s4, v75
    v_lshlrev_b32 v76, 10, v75
    v_lshl_add_u32 v76, v3, 5, v76
    v_lshl_add_u32 v77, v74, 4, v76
    v_lshlrev_b32 v1, 5, v3
    v_lshl_add_u32 v1, v74, 4, v1
    v_and_b32 v2, 63, v0
    v_lshlrev_b32 v2, 4, v2
    s_waitcnt lgkmcnt(0)
    ''')
    srd_fin(k, 20, WS_BYTES)
    k(f'v_add_u32 v1, 0x{WS_K:x}, v1')
    k(f'v_add_u32 v2, 0x{WS_VT:x}, v2')
    k(f'buffer_load_dwordx4 v[4:7], v77, s[20:23], 0 offen offset:{WS_Q}')
    k('''
    s_mov_b32 s5, 0
    s_mov_b32 s6, 0
    buffer_load_dwordx4 v[8:11], v1, s[20:23], s5 offen
    buffer_load_dwordx4 v[16:19], v2, s[20:23], s6 offen
    buffer_load_dwordx4 v[20:23], v2, s[20:23], s6 offen offset:1024
    v_mov_b32 v72, 0xff800000
    ''')
    for i in range(16): k(f'v_mov_b32 v{48+i}, 0')
    k('s_mov_b32 s7, 0')
    k('L2_loop:')
    for half in range(2):
        kc, kn = (8, 12) if half == 0 else (12, 8)
        vc, vn = (16, 24) if half == 0 else (24, 16)
        k('''
        s_add_u32 s5, s5, 1024
        s_add_u32 s6, s6, 2048
        ''')
        k(f'buffer_load_dwordx4 v[{kn}:{kn+3}], v1, s[20:23], s5 offen')
        k(f'buffer_load_dwordx4 v[{vn}:{vn+3}], v2, s[20:23], s6 offen')
        k(f'buffer_load_dwordx4 v[{vn+4}:{vn+7}], v2, s[20:23], s6 offen offset:1024')
        k('s_waitcnt vmcnt(3)')
        k(f'v_mfma_f32_32x32x16_bf16 v[32:47], v[{kc}:{kc+3}], v[4:7], 0')
        k('''
        v_max3_f32 v73, v32, v33, v34
        v_max3_f32 v78, v35, v36, v37
        v_max3_f32 v73, v73, v38, v39
        v_max3_f32 v78, v78, v40, v41
        v_max3_f32 v73, v73, v42, v43
        v_max3_f32 v78, v78, v44, v45
        v_max3_f32 v73, v73, v46, v47
        v_max_f32 v73, v73, v78
        v_mov_b32 v78, v73
        v_permlane32_swap_b32 v73, v78
        v_max3_f32 v73, v73, v78, v72
        v_cmp_gt_f32 vcc, v73, v72
        ''')
        k(f's_cbranch_vccz L2_skip{half}')
        k('''
        v_sub_f32 v78, v72, v73
        v_exp_f32 v78, v78
        v_mov_b32 v72, v73
        ''')
        for i in range(16): k(f'v_mul_f32 v{48+i}, v78, v{48+i}')
        k(f'L2_skip{half}:')
        for i in range(16):
            k(f'v_sub_f32 v{32+i}, v{32+i}, v72')
        for i in range(16):
            k(f'v_exp_f32 v{32+i}, v{32+i}')
        for i in range(8):
            k(f'v_cvt_pk_bf16_f32 v{64+i}, v{32+2*i}, v{33+2*i}')
        k(f'v_mfma_f32_32x32x16_bf16 v[48:63], v[{vc}:{vc+3}], v[64:67], v[48:63]')
        k(f'v_mfma_f32_32x32x16_bf16 v[48:63], v[{vc+4}:{vc+7}], v[68:71], v[48:63]')
    k('''
    s_add_u32 s7, s7, 2
    s_cmp_lt_u32 s7, 64
    s_cbranch_scc1 L2_loop
    v_mov_b32 v73, v56
    v_permlane32_swap_b32 v56, v73
    v_rcp_f32 v56, v56
    ''')
    for i in range(8): k(f'v_mul_f32 v{48+i}, v56, v{48+i}')
    k('''
    v_cvt_pk_bf16_f32 v64, v48, v49
    v_cvt_pk_bf16_f32 v65, v50, v51
    v_cvt_pk_bf16_f32 v66, v52, v53
    v_cvt_pk_bf16_f32 v67, v54, v55
    v_lshl_add_u32 v77, v74, 3, v76
    ''')
    k(f'v_add_u32 v77, 0x{WS_O:x}, v77')
    k('''
    buffer_store_dwordx2 v[64:65], v77, s[20:23], 0 offen
    buffer_store_dwordx2 v[66:67], v77, s[20:23], 0 offen offset:16
    ''')
    k('L2_end:')
    k('s_endpgm')
    return k

def rowinfo(k):
    k('''
    s_and_b32 s4, s2, 15
    s_lshr_b32 s5, s2, 4
    v_lshrrev_b32 v2, 6, v0
    v_and_b32 v3, 31, v0
    v_bfe_u32 v11, v0, 5, 1
    s_lshl_b32 s6, s4, 7
    v_lshlrev_b32 v10, 5, v2
    v_add_u32 v10, v10, v3
    v_add_u32 v10, s6, v10
    ''')

def traddr(k, dst):
    k(f'''
    v_and_b32 v1, 63, v0
    v_lshrrev_b32 v2, 5, v1
    v_bfe_u32 v3, v1, 2, 2
    v_lshl_add_u32 v2, v2, 3, v3
    v_lshlrev_b32 v2, 6, v2
    v_bfe_u32 v3, v1, 4, 1
    v_lshl_add_u32 v2, v3, 5, v2
    v_and_b32 v3, 3, v1
    v_lshl_add_u32 v{dst}, v3, 3, v2
    ''')

def btile_load(k, srdreg, rowbytes_log2_or_mul, colbyte_sreg, nrows, lds_off=0):
    k('v_lshrrev_b32 v7, 2, v0')
    k('v_and_b32 v8, 3, v0')
    k('v_lshlrev_b32 v9, 4, v0')
    if isinstance(rowbytes_log2_or_mul, int) and rowbytes_log2_or_mul < 32:
        k(f'v_lshlrev_b32 v12, {rowbytes_log2_or_mul}, v7')
        stride = 1 << rowbytes_log2_or_mul
    else:
        stride = rowbytes_log2_or_mul
        k(f's_mov_b32 s7, {stride}')
        k('v_mul_lo_u32 v12, v7, s7')
    k('v_lshl_add_u32 v12, v8, 4, v12')
    k(f'v_add_u32 v12, s{colbyte_sreg}, v12')
    npieces = nrows * 4
    nit = (npieces + 255) // 256
    i = 0
    while i < nit:
        nb = min(8, nit - i)
        for b in range(nb):
            k(f's_mov_b32 s7, {(i+b)*64*stride}')
            k(f'buffer_load_dwordx4 v[{32+4*b}:{35+4*b}], v12, s[{srdreg}:{srdreg+3}], s7 offen')
        for b in range(nb):
            k(f's_waitcnt vmcnt({nb-1-b})')
            last = (i + b + 1) * 256 > npieces
            if last:
                k(f'v_cmp_gt_u32 vcc, {npieces - (i+b)*256}, v0')
                k('s_and_saveexec_b64 s[28:29], vcc')
            o = lds_off + (i+b)*4096
            if o > 65535 - 16:
                k('v_add_u32 v15, 0x10000, v9')
                k(f'ds_write_b128 v15, v[{32+4*b}:{35+4*b}] offset:{o - 65536}')
            else:
                k(f'ds_write_b128 v9, v[{32+4*b}:{35+4*b}] offset:{o}')
            if last:
                k('s_mov_b64 exec, s[28:29]')
        i += nb

def resid_epilogue(k, acc, srd_res, res_off, srd_out, out_off):
    k('''
    v_lshlrev_b32 v6, 10, v10
    v_lshl_add_u32 v6, v11, 3, v6
    s_lshl_b32 s7, s5, 6
    v_add_u32 v6, s7, v6
    ''')
    if res_off: k(f'v_add_u32 v7, 0x{res_off:x}, v6')
    else: k('v_mov_b32 v7, v6')
    if out_off: k(f'v_add_u32 v6, 0x{out_off:x}, v6')
    for q in range(4):
        k(f'buffer_load_dwordx2 v[{32+2*q}:{33+2*q}], v7, s[{srd_res}:{srd_res+3}], 0 offen offset:{q*16}')
    for q in range(4):
        k(f's_waitcnt vmcnt({3-q})')
        for e in range(4):
            src = 32 + 2*q + e//2
            if e % 2 == 0: k(f'v_lshlrev_b32 v2, 16, v{src}')
            else: k(f'v_and_b32 v2, 0xffff0000, v{src}')
            k(f'v_add_f32 v{acc+4*q+e}, v2, v{acc+4*q+e}')
        k(f'v_cvt_pk_bf16_f32 v2, v{acc+4*q}, v{acc+4*q+1}')
        k(f'v_cvt_pk_bf16_f32 v3, v{acc+4*q+2}, v{acc+4*q+3}')
        k(f'buffer_store_dwordx2 v[2:3], v6, s[{srd_out}:{srd_out+3}], 0 offen offset:{q*16}')
        k('s_nop 1')

def gen_k3():
    k = Kern(); AV = 128
    k('''
    s_cmp_ge_u32 s2, 256
    s_cbranch_scc1 L3_end
    s_load_dwordx2 s[8:9], s[0:1], 0
    s_load_dwordx2 s[12:13], s[0:1], 32
    s_load_dwordx2 s[20:21], s[0:1], 88
    ''')
    rowinfo(k)
    k('''
    v_lshlrev_b32 v6, 10, v10
    v_lshl_add_u32 v6, v11, 4, v6
    s_waitcnt lgkmcnt(0)
    ''')
    srd_fin(k, 8, 2048*1024); srd_fin(k, 12, 512*1024); srd_fin(k, 20, WS_BYTES)
    k(f'v_add_u32 v6, 0x{WS_O:x}, v6')
    for s in range(32):
        k(f'buffer_load_dwordx4 v[{AV+4*s}:{AV+4*s+3}], v6, s[20:23], 0 offen offset:{s*32}')
    k('s_lshl_b32 s31, s5, 6')
    btile_load(k, 12, 10, 31, 512)
    traddr(k, 12)
    k('''
    s_waitcnt vmcnt(0) lgkmcnt(0)
    s_barrier
    ''')
    gemm_loop(k, AV, 12, acc=16, bbuf=32, nsteps=32)
    resid_epilogue(k, 16, 8, 0, 20, WS_H)
    k('L3_end:')
    k('s_endpgm')
    return k

def gen_k4():
    k = Kern(); AV = 128
    k('''
    s_cmp_ge_u32 s2, 256
    s_cbranch_scc1 L4_end
    s_load_dwordx2 s[12:13], s[0:1], 48
    s_load_dwordx2 s[16:17], s[0:1], 56
    s_load_dwordx2 s[20:21], s[0:1], 88
    ''')
    rowinfo(k)
    k('''
    v_lshlrev_b32 v6, 10, v10
    v_lshl_add_u32 v6, v11, 4, v6
    s_waitcnt lgkmcnt(0)
    ''')
    srd_fin(k, 12, 512*2752); srd_fin(k, 16, 512*2752); srd_fin(k, 20, WS_BYTES)
    k(f'v_add_u32 v6, 0x{WS_H:x}, v6')
    for s in range(32):
        k(f'buffer_load_dwordx4 v[{AV+4*s}:{AV+4*s+3}], v6, s[20:23], 0 offen offset:{s*32}')
    k('s_waitcnt vmcnt(0)')
    k('s_mov_b32 s30, 0x3f803f80')
    for i in range(4):
        k(f'v_mov_b32 v{2+i}, 0')
        k(f'v_mov_b32 v{6+i}, 0')
    ln_body(k, AV)
    traddr(k, 13)
    k('s_mov_b32 s34, s5')
    k('L4_loop:')
    k('s_lshl_b32 s31, s34, 6')
    btile_load(k, 12, 2752, 31, 512, lds_off=0)
    btile_load(k, 16, 2752, 31, 512, lds_off=32768)
    k('''
    s_waitcnt vmcnt(0) lgkmcnt(0)
    s_barrier
    ''')
    gemm_loop(k, AV, 13, acc=64, bbuf=32, nsteps=32, lds_base=0)
    gemm_loop(k, AV, 13, acc=80, bbuf=48, nsteps=32, lds_base=32768)
    k('s_barrier')
    k('''
    s_mov_b32 s7, 2752
    v_mul_lo_u32 v6, v10, s7
    v_lshl_add_u32 v6, v11, 3, v6
    v_add_u32 v6, s31, v6
    s_mov_b32 s30, 0xbfb8aa3b
    ''')
    k(f'v_add_u32 v6, 0x{WS_G:x}, v6')
    for q in range(4):
        for e in range(4):
            a = 64 + 4*q + e; u = 80 + 4*q + e
            k(f'v_mul_f32 v2, s30, v{a}')
            k('v_exp_f32 v2, v2')
            k('v_add_f32 v2, 1.0, v2')
            k('v_rcp_f32 v2, v2')
            k(f'v_mul_f32 v{a}, v{a}, v2')
            k(f'v_mul_f32 v{a}, v{a}, v{u}')
        k(f'v_cvt_pk_bf16_f32 v2, v{64+4*q}, v{65+4*q}')
        k(f'v_cvt_pk_bf16_f32 v3, v{66+4*q}, v{67+4*q}')
        k(f'buffer_store_dwordx2 v[2:3], v6, s[20:23], 0 offen offset:{q*16}')
        k('s_nop 1')
    k('''
    s_add_u32 s34, s34, 16
    s_cmp_lt_u32 s34, 43
    s_cbranch_scc1 L4_loop
    ''')
    k('L4_end:')
    k('s_endpgm')
    return k

def gen_k5():
    k = Kern(); AV = 128
    k('''
    s_cmp_ge_u32 s2, 256
    s_cbranch_scc1 L5_end
    s_load_dwordx2 s[12:13], s[0:1], 64
    s_load_dwordx2 s[16:17], s[0:1], 72
    s_load_dwordx2 s[20:21], s[0:1], 88
    ''')
    rowinfo(k)
    k('''
    s_mov_b32 s7, 2752
    v_mul_lo_u32 v14, v10, s7
    v_lshl_add_u32 v14, v11, 4, v14
    s_waitcnt lgkmcnt(0)
    ''')
    srd_fin(k, 12, 1376*1024); srd_fin(k, 16, 2048*1024); srd_fin(k, 20, WS_BYTES)
    k(f'v_add_u32 v14, 0x{WS_G:x}, v14')
    k('s_lshl_b32 s31, s5, 6')
    btile_load(k, 12, 10, 31, 1376)
    traddr(k, 12)
    k('v_add_u32 v13, 0x10000, v12')
    k('''
    s_waitcnt vmcnt(0) lgkmcnt(0)
    s_barrier
    ''')
    done = 0
    while done < 86:
        n = min(32, 86 - done)
        for s in range(n):
            k(f'buffer_load_dwordx4 v[{AV+4*s}:{AV+4*s+3}], v14, s[20:23], 0 offen offset:{(done+s)*32}')
        k('s_waitcnt vmcnt(0)')
        gemm_loop5(k, AV, 12, 16, 32, n, done)
        done += n
    resid_epilogue(k, 16, 20, WS_H, 16, 0)
    k('L5_end:')
    k('s_endpgm')
    return k

def gemm_loop5(k, AV, vaddr, acc, bbuf, nsteps, s0):
    W = 4
    def rd(s):
        b = bbuf + 4*(s % W)
        off = (s0 + s) * 1024
        va = vaddr
        if off >= 65536:
            off -= 65536; va = 13
        k(f'ds_read_b64_tr_b16 v[{b}:{b+1}], v{va} offset:{off}')
        k(f'ds_read_b64_tr_b16 v[{b+2}:{b+3}], v{va} offset:{off + 256}')
    for s in range(min(W-1, nsteps)): rd(s)
    for s in range(nsteps):
        if s + W - 1 < nsteps: rd(s + W - 1)
        outstanding = 2 * (min(s + W - 1, nsteps - 1) - s)
        k(f's_waitcnt lgkmcnt({outstanding})')
        b = bbuf + 4*(s % W)
        c = f'v[{acc}:{acc+15}]' if (s0 + s) > 0 else '0'
        k(f'v_mfma_f32_32x32x16_bf16 v[{acc}:{acc+15}], v[{b}:{b+3}], v[{AV+4*s}:{AV+4*s+3}], {c}')

HEADER = '''; generated by gen/gen.py
{launches}
.amdgcn_target "amdgcn-amd-amdhsa--gfx950"
.text
'''
def kd(name, vgpr=256, sgpr=102):
    return f'''.amdhsa_kernel {name}
  .amdhsa_next_free_vgpr {vgpr}
  .amdhsa_next_free_sgpr {sgpr}
  .amdhsa_accum_offset {(vgpr+3)//4*4}
  .amdhsa_group_segment_fixed_size 0
  .amdhsa_kernarg_size 96
  .amdhsa_user_sgpr_count 2
  .amdhsa_user_sgpr_kernarg_segment_ptr 1
  .amdhsa_system_sgpr_workgroup_id_x 1
.end_amdhsa_kernel
'''

def build(kernels, path):
    launches = '\n'.join(f'; @launch kernel={n} grid=({g},1,1) block=({b},1,1) lds={l}' for n, _, g, b, l, _ in kernels)
    s = HEADER.format(launches=launches)
    for n, k, g, b, l, v in kernels:
        s += f'.globl {n}\n.p2align 8\n.type {n},@function\n{n}:\n' + k.finalize() + '\n'
    s += '.section .rodata,"a"\n.p2align 6\n'
    for n, k, g, b, l, v in kernels:
        s += kd(n, v)
    open(path, 'w').write(s)

if __name__ == '__main__':
    ks = [('k1_kernel', gen_k1(), 272, 256, 32768, 256), ('k2_kernel', gen_k2(), 512, 256, 0, 80), ('k3_kernel', gen_k3(), 256, 256, 32768, 256), ('k4_kernel', gen_k4(), 256, 256, 65536, 256), ('k5_kernel', gen_k5(), 256, 256, 88064, 256)]
    build(ks, sys.argv[1] if len(sys.argv) > 1 else 'out.s')
```

```python
import sys, math
sys.path.insert(0, 'gen')
from asmdsl import Kern

WS_Q  = 0x000000
WS_K  = 0x200000
WS_VT = 0x210000
WS_O  = 0x300000
WS_H  = 0x500000
WS_G  = 0x700000
WS_BYTES = 0x1000000
QSCALE = 0.25 * math.log2(math.e)

def f32bits(x):
    import struct
    return struct.unpack('<I', struct.pack('<f', x))[0]

def srd(k, d, slot, nbytes, off=0):
    k(f's_load_dwordx2 s[{d}:{d+1}], s[0:1], {slot*8}')

def srd_fin(k, d, nbytes):
    k(f's_mov_b32 s{d+2}, {nbytes}')
    k(f's_mov_b32 s{d+3}, 0x00020000')

def ln_gemm_prologue(k, AV, sX):
    k('s_mov_b32 s30, 0x3f803f80')
    for i in range(4):
        k(f'v_mov_b32 v{2+i}, 0')
        k(f'v_mov_b32 v{6+i}, 0')
    for s in range(32):
        k(f's_waitcnt vmcnt({31-s})')
        for j in range(4):
            r = AV + 4*s + j
            k(f'v_dot2_f32_bf16 v{2+j}, v{r}, s30, v{2+j}')
            k(f'v_dot2_f32_bf16 v{6+j}, v{r}, v{r}, v{6+j}')
    k('''
    v_add_f32 v2, v2, v3
    v_add_f32 v4, v4, v5
    v_add_f32 v6, v6, v7
    v_add_f32 v8, v8, v9
    v_add_f32 v2, v2, v4
    v_add_f32 v6, v6, v8
    v_mov_b32 v3, v2
    v_mov_b32 v7, v6
    v_permlane32_swap_b32 v2, v3
    v_permlane32_swap_b32 v6, v7
    v_add_f32 v2, v2, v3
    v_add_f32 v6, v6, v7
    v_mul_f32 v2, 0x3b000000, v2
    v_mul_f32 v6, 0x3b000000, v6
    v_mul_f32 v3, v2, v2
    v_sub_f32 v6, v6, v3
    v_max_f32 v6, 0, v6
    v_add_f32 v6, 0x3727c5ac, v6
    v_rsq_f32 v6, v6
    ''')
    k('v_mul_f32 v7, v2, v6')
    k('v_sub_f32 v7, 0, v7')
    for r in range(AV, AV+128):
        k(f'v_lshlrev_b32 v2, 16, v{r}')
        k(f'v_and_b32 v3, 0xffff0000, v{r}')
        k(f'v_fma_f32 v2, v2, v6, v7')
        k(f'v_fma_f32 v3, v3, v6, v7')
        k(f'v_cvt_pk_bf16_f32 v{r}, v2, v3')

def gen_k1():
    k = Kern()
    AV = 128
    k('''
    s_cmp_ge_u32 s2, 272
    s_cbranch_scc1 L1_end
    s_load_dwordx2 s[8:9], s[0:1], 0
    s_load_dwordx2 s[12:13], s[0:1], 8
    s_load_dwordx2 s[16:17], s[0:1], 16
    s_load_dwordx2 s[24:25], s[0:1], 24
    s_load_dwordx2 s[20:21], s[0:1], 88
    s_and_b32 s4, s2, 15
    s_lshr_b32 s5, s2, 4
    v_and_b32 v1, 63, v0
    v_lshrrev_b32 v2, 6, v0
    v_and_b32 v3, 31, v0
    v_bfe_u32 v4, v0, 5, 1
    s_lshl_b32 s6, s4, 7
    v_lshlrev_b32 v5, 5, v2
    v_add_u32 v5, v5, v3
    v_add_u32 v5, s6, v5
    v_mov_b32 v10, v5
    v_mov_b32 v11, v4
    v_lshlrev_b32 v6, 10, v5
    v_lshl_add_u32 v6, v4, 4, v6
    s_waitcnt lgkmcnt(0)
    ''')
    srd_fin(k, 8, 2048*1024); srd_fin(k, 12, 512*1024); srd_fin(k, 16, 512*32); srd_fin(k, 24, 512*32); srd_fin(k, 20, WS_BYTES)
    for s in range(32):
        k(f'buffer_load_dwordx4 v[{AV+4*s}:{AV+4*s+3}], v6, s[8:11], 0 offen offset:{s*32}')
    k('''
    v_lshrrev_b32 v7, 2, v0
    v_and_b32 v8, 3, v0
    v_lshlrev_b32 v9, 4, v0
    s_cmp_eq_u32 s5, 16
    s_cbranch_scc1 L1_kv
    v_lshlrev_b32 v12, 10, v7
    v_lshl_add_u32 v12, v8, 4, v12
    s_lshl_b32 s7, s5, 6
    v_add_u32 v12, s7, v12
    ''')
    for i in range(8):
        k(f'buffer_load_dwordx4 v[{32+4*i}:{35+4*i}], v12, s[12:15], 0 offen')
        if i < 7: k('v_add_u32 v12, 0x10000, v12')
    k('s_branch L1_bstore')
    k('L1_kv:')
    k('''
    v_lshlrev_b32 v12, 5, v7
    v_and_b32 v13, 1, v8
    v_lshl_add_u32 v12, v13, 4, v12
    v_cmp_gt_u32 vcc, 2, v8
    s_and_saveexec_b64 s[28:29], vcc
    ''')
    for i in range(8):
        k(f's_mov_b32 s7, {i*2048}')
        k(f'buffer_load_dwordx4 v[{32+4*i}:{35+4*i}], v12, s[16:19], s7 offen')
    k('s_andn2_b64 exec, s[28:29], exec')
    for i in range(8):
        k(f's_mov_b32 s7, {i*2048}')
        k(f'buffer_load_dwordx4 v[{32+4*i}:{35+4*i}], v12, s[24:27], s7 offen')
    k('s_mov_b64 exec, s[28:29]')
    k('L1_bstore:')
    for i in range(8):
        k(f's_waitcnt vmcnt({7-i})')
        k(f'ds_write_b128 v9, v[{32+4*i}:{35+4*i}] offset:{i*4096}')
    k('s_waitcnt vmcnt(0)')
    k('s_mov_b32 s30, 0x3f803f80')
    for i in range(4):
        k(f'v_mov_b32 v{2+i}, 0')
        k(f'v_mov_b32 v{6+i}, 0')
    ln_body(k, AV)
    k('''
    v_and_b32 v1, 63, v0
    v_lshrrev_b32 v2, 5, v1
    v_bfe_u32 v3, v1, 2, 2
    v_lshl_add_u32 v2, v2, 3, v3
    v_lshlrev_b32 v2, 6, v2
    v_bfe_u32 v3, v1, 4, 1
    v_lshl_add_u32 v2, v3, 5, v2
    v_and_b32 v3, 3, v1
    v_lshl_add_u32 v12, v3, 3, v2
    s_waitcnt lgkmcnt(0)
    s_barrier
    ''')
    gemm_loop(k, AV, 12, acc=16, bbuf=32, nsteps=32)
    k('s_cmp_eq_u32 s5, 16')
    k('s_cbranch_scc1 L1_epi_kv')
    k(f's_mov_b32 s30, 0x{f32bits(QSCALE):08x}')
    k('''
    v_lshlrev_b32 v6, 10, v10
    v_lshl_add_u32 v6, v11, 3, v6
    s_lshl_b32 s7, s5, 6
    v_add_u32 v6, s7, v6
    ''')
    for q in range(4):
        for e in range(4):
            k(f'v_mul_f32 v{16+4*q+e}, s30, v{16+4*q+e}')
        k(f'v_cvt_pk_bf16_f32 v{2}, v{16+4*q}, v{17+4*q}')
        k(f'v_cvt_pk_bf16_f32 v{3}, v{18+4*q}, v{19+4*q}')
        k(f'buffer_store_dwordx2 v[2:3], v6, s[20:23], 0 offen offset:{WS_Q + q*16}')
        k('s_nop 1')
    k('s_branch L1_end')
    k('L1_epi_kv:')
    k('''
    v_lshlrev_b32 v6, 5, v10
    v_lshl_add_u32 v6, v11, 3, v6
    ''')
    k(f'v_add_u32 v6, 0x{WS_K:x}, v6')
    for q in range(2):
        k(f'v_cvt_pk_bf16_f32 v{2}, v{16+4*q}, v{17+4*q}')
        k(f'v_cvt_pk_bf16_f32 v{3}, v{18+4*q}, v{19+4*q}')
        k(f'buffer_store_dwordx2 v[2:3], v6, s[20:23], 0 offen offset:{q*16}')
        k('s_nop 1')
    k('''
    v_lshrrev_b32 v6, 4, v10
    v_lshlrev_b32 v6, 10, v6
    v_bfe_u32 v7, v10, 2, 1
    v_lshl_add_u32 v6, v7, 9, v6
    v_and_b32 v7, 3, v10
    v_lshl_add_u32 v6, v7, 1, v6
    v_bfe_u32 v7, v10, 3, 1
    v_lshl_add_u32 v6, v7, 3, v6
    v_lshl_add_u32 v6, v11, 6, v6
    ''')
    k(f'v_add_u32 v6, 0x{WS_VT:x}, v6')
    for q in range(2):
        for e in range(4):
            k(f'v_cvt_pk_bf16_f32 v2, v{24+4*q+e}, v{24+4*q+e}')
            k(f'buffer_store_short v2, v6, s[20:23], 0 offen offset:{(8*q+e)*16}')
    k('''
    v_lshrrev_b32 v6, 5, v0
    s_lshl_b32 s7, s4, 3
    v_add_u32 v6, s7, v6
    v_lshlrev_b32 v6, 10, v6
    v_and_b32 v7, 15, v0
    v_add_u32 v8, 16, v7
    v_bfe_u32 v9, v0, 4, 1
    v_lshl_add_u32 v8, v9, 5, v8
    v_lshl_add_u32 v6, v8, 4, v6
    ''')
    k(f'v_add_u32 v6, 0x{WS_VT:x}, v6')
    k('''
    v_mov_b32 v2, 0
    v_mov_b32 v3, 0x3f803f80
    v_cmp_eq_u32 vcc, 0, v7
    v_cndmask_b32 v2, v2, v3, vcc
    v_mov_b32 v3, v2
    v_mov_b32 v4, v2
    v_mov_b32 v5, v2
    buffer_store_dwordx4 v[2:5], v6, s[20:23], 0 offen
    ''')
    k('L1_end:')
    k('s_endpgm')
    return k

def ln_body(k, AV):
    for s in range(32):
        for j in range(4):
            r = AV + 4*s + j
            k(f'v_dot2_f32_bf16 v{2+j}, v{r}, s30, v{2+j}')
            k(f'v_dot2_f32_bf16 v{6+j}, v{r}, v{r}, v{6+j}')
    k('''
    v_add_f32 v2, v2, v3
    v_add_f32 v4, v4, v5
    v_add_f32 v6, v6, v7
    v_add_f32 v8, v8, v9
    v_add_f32 v2, v2, v4
    v_add_f32 v6, v6, v8
    v_mov_b32 v3, v2
    v_mov_b32 v7, v6
    v_permlane32_swap_b32 v2, v3
    v_permlane32_swap_b32 v6, v7
    v_add_f32 v2, v2, v3
    v_add_f32 v6, v6, v7
    v_mul_f32 v2, 0x3b000000, v2
    v_mul_f32 v6, 0x3b000000, v6
    v_mul_f32 v3, v2, v2
    v_sub_f32 v6, v6, v3
    v_max_f32 v6, 0, v6
    v_add_f32 v6, 0x3727c5ac, v6
    v_rsq_f32 v6, v6
    ''')
    k('v_mul_f32 v7, v2, v6')
    k('v_sub_f32 v7, 0, v7')
    for r in range(AV, AV+128):
        k(f'v_lshlrev_b32 v2, 16, v{r}')
        k(f'v_and_b32 v3, 0xffff0000, v{r}')
        k(f'v_fma_f32 v2, v2, v6, v7')
        k(f'v_fma_f32 v3, v3, v6, v7')
        k(f'v_cvt_pk_bf16_f32 v{r}, v2, v3')

def gemm_loop(k, AV, vaddr, acc, bbuf, nsteps, lds_base=0):
    W = 4
    def rd(s):
        b = bbuf + 4*(s % W)
        k(f'ds_read_b64_tr_b16 v[{b}:{b+1}], v{vaddr} offset:{lds_base + s*1024}')
        k(f'ds_read_b64_tr_b16 v[{b+2}:{b+3}], v{vaddr} offset:{lds_base + s*1024 + 256}')
    for s in range(min(W-1, nsteps)): rd(s)
    for s in range(nsteps):
        if s + W - 1 < nsteps: rd(s + W - 1)
        outstanding = 2 * (min(s + W - 1, nsteps - 1) - s)
        k(f's_waitcnt lgkmcnt({outstanding})')
        b = bbuf + 4*(s % W)
        c = f'v[{acc}:{acc+15}]' if s > 0 else '0'
        k(f'v_mfma_f32_32x32x16_bf16 v[{acc}:{acc+15}], v[{b}:{b+3}], v[{AV+4*s}:{AV+4*s+3}], {c}')

def gen_k2():
    k = Kern()
    k('''
    s_cmp_ge_u32 s2, 256
    s_cbranch_scc1 L2_end
    s_load_dwordx2 s[20:21], s[0:1], 88
    v_and_b32 v3, 31, v0
    v_bfe_u32 v74, v0, 5, 1
    v_lshrrev_b32 v75, 6, v0
    s_lshl_b32 s4, s2, 3
    v_add_u32 v75, s4, v75
    v_lshlrev_b32 v76, 10, v75
    v_lshl_add_u32 v76, v3, 5, v76
    v_lshl_add_u32 v77, v74, 4, v76
    v_lshlrev_b32 v1, 4, v0
    s_waitcnt lgkmcnt(0)
    ''')
    srd_fin(k, 20, WS_BYTES)
    k(f'buffer_load_dwordx4 v[4:7], v77, s[20:23], 0 offen offset:{WS_Q}')
    k(f'v_add_u32 v2, 0x{WS_K:x}, v1')
    for i in range(8):
        k(f's_mov_b32 s7, {i*8192}')
        k(f'buffer_load_dwordx4 v[{80+4*i}:{83+4*i}], v2, s[20:23], s7 offen')
    k('''
    v_lshrrev_b32 v2, 5, v0
    v_lshlrev_b32 v2, 10, v2
    v_bfe_u32 v3, v0, 4, 1
    v_lshl_add_u32 v2, v3, 9, v2
    v_and_b32 v3, 15, v0
    v_lshl_add_u32 v2, v3, 4, v2
    ''')
    k(f'v_add_u32 v2, 0x{WS_VT:x}, v2')
    for i in range(8):
        k(f's_mov_b32 s7, {i*16384}')
        k(f'buffer_load_dwordx4 v[{112+4*i}:{115+4*i}], v2, s[20:23], s7 offen')
    for i in range(8):
        k(f's_waitcnt vmcnt({15-i})')
        k(f'ds_write_b128 v1, v[{80+4*i}:{83+4*i}] offset:{i*8192}')
    k('v_add_u32 v3, 0x10000, v1')
    for i in range(8):
        k(f's_waitcnt vmcnt({7-i})')
        k(f'ds_write_b128 v3, v[{112+4*i}:{115+4*i}] offset:{i*8192}')
    k('''
    v_and_b32 v3, 31, v0
    v_lshlrev_b32 v1, 5, v3
    v_lshl_add_u32 v1, v74, 4, v1
    v_and_b32 v3, 15, v0
    v_lshlrev_b32 v2, 4, v3
    v_lshl_add_u32 v2, v74, 8, v2
    v_add_u32 v2, 0x10000, v2
    v_mov_b32 v72, 0
    v_mov_b32 v112, 0xff800000
    v_mov_b32 v79, 0xff800000
    v_and_b32 v3, 31, v0
    v_mov_b32 v8, 0
    v_mov_b32 v9, 0x3f803f80
    v_cmp_eq_u32 vcc, 16, v3
    v_cndmask_b32 v8, v8, v9, vcc
    ''')
    for r in list(range(16, 32)): k(f'v_mov_b32 v{r}, v8')
    for i in range(16): k(f'v_mov_b32 v{48+i}, 0')
    for i in range(16): k(f'v_mov_b32 v{96+i}, 0')
    k('''
    s_mov_b32 s8, 0xffff
    s_mov_b32 s9, 0xffff
    s_waitcnt vmcnt(0) lgkmcnt(0)
    s_barrier
    ds_read_b128 v[8:11], v1
    s_mov_b64 exec, s[8:9]
    ds_read_b128 v[16:19], v2
    ds_read_b128 v[20:23], v2 offset:512
    s_mov_b64 exec, -1
    s_mov_b32 s7, 0
    ''')
    k('L2_loop:')
    for half in range(2):
        kc, kn = (8, 12) if half == 0 else (12, 8)
        vc, vn = (16, 24) if half == 0 else (24, 16)
        k('''
        v_add_u32 v1, 1024, v1
        v_add_u32 v2, 1024, v2
        ''')
        k(f'ds_read_b128 v[{kn}:{kn+3}], v1')
        k('s_mov_b64 exec, s[8:9]')
        k(f'ds_read_b128 v[{vn}:{vn+3}], v2')
        k(f'ds_read_b128 v[{vn+4}:{vn+7}], v2 offset:512')
        k('s_mov_b64 exec, -1')
        k('s_waitcnt lgkmcnt(3)')
        k(f'v_mfma_f32_32x32x16_bf16 v[32:47], v[{kc}:{kc+3}], v[4:7], v[96:111]')
        k('''
        v_max3_f32 v73, v32, v33, v34
        v_max3_f32 v78, v35, v36, v37
        v_max3_f32 v73, v73, v38, v39
        v_max3_f32 v78, v78, v40, v41
        v_max3_f32 v73, v73, v42, v43
        v_max3_f32 v78, v78, v44, v45
        v_max3_f32 v73, v73, v46, v47
        v_max_f32 v73, v73, v78
        v_mov_b32 v78, v73
        v_permlane32_swap_b32 v73, v78
        v_max_f32 v73, v73, v78
        v_cmp_gt_f32 vcc, v73, v112
        ''')
        k(f's_cbranch_vccz L2_skip{half}')
        k('''
        v_max_f32 v73, v73, v79
        v_sub_f32 v72, v72, v73
        v_sub_f32 v78, 0, v73
        v_exp_f32 v78, v78
        v_mov_b32 v112, 0x41000000
        v_mov_b32 v79, 0
        ''')
        for i in range(16): k(f'v_mul_f32 v{48+i}, v78, v{48+i}')
        for i in range(16): k(f'v_sub_f32 v{32+i}, v{32+i}, v73')
        for i in range(16): k(f'v_mov_b32 v{96+i}, v72')
        k(f'L2_skip{half}:')
        for i in range(16):
            k(f'v_exp_f32 v{32+i}, v{32+i}')
        for i in range(8):
            k(f'v_cvt_pk_bf16_f32 v{64+i}, v{32+2*i}, v{33+2*i}')
        k(f'v_mfma_f32_32x32x16_bf16 v[48:63], v[{vc}:{vc+3}], v[64:67], v[48:63]')
        k(f'v_mfma_f32_32x32x16_bf16 v[48:63], v[{vc+4}:{vc+7}], v[68:71], v[48:63]')
    k('''
    s_add_u32 s7, s7, 2
    s_cmp_lt_u32 s7, 64
    s_cbranch_scc1 L2_loop
    s_waitcnt lgkmcnt(0)
    v_mov_b32 v73, v56
    v_permlane32_swap_b32 v56, v73
    v_rcp_f32 v56, v56
    ''')
    for i in range(8): k(f'v_mul_f32 v{48+i}, v56, v{48+i}')
    k('''
    v_cvt_pk_bf16_f32 v64, v48, v49
    v_cvt_pk_bf16_f32 v65, v50, v51
    v_cvt_pk_bf16_f32 v66, v52, v53
    v_cvt_pk_bf16_f32 v67, v54, v55
    v_lshl_add_u32 v77, v74, 3, v76
    ''')
    k(f'v_add_u32 v77, 0x{WS_O:x}, v77')
    k('''
    buffer_store_dwordx2 v[64:65], v77, s[20:23], 0 offen
    buffer_store_dwordx2 v[66:67], v77, s[20:23], 0 offen offset:16
    ''')
    k('L2_end:')
    k('s_endpgm')
    return k

def rowinfo(k):
    k('''
    s_and_b32 s4, s2, 15
    s_lshr_b32 s5, s2, 4
    v_lshrrev_b32 v2, 6, v0
    v_and_b32 v3, 31, v0
    v_bfe_u32 v11, v0, 5, 1
    s_lshl_b32 s6, s4, 7
    v_lshlrev_b32 v10, 5, v2
    v_add_u32 v10, v10, v3
    v_add_u32 v10, s6, v10
    ''')

def traddr(k, dst):
    k(f'''
    v_and_b32 v1, 63, v0
    v_lshrrev_b32 v2, 5, v1
    v_bfe_u32 v3, v1, 2, 2
    v_lshl_add_u32 v2, v2, 3, v3
    v_lshlrev_b32 v2, 6, v2
    v_bfe_u32 v3, v1, 4, 1
    v_lshl_add_u32 v2, v3, 5, v2
    v_and_b32 v3, 3, v1
    v_lshl_add_u32 v{dst}, v3, 3, v2
    ''')

def btile_load(k, srdreg, rowbytes_log2_or_mul, colbyte_sreg, nrows, lds_off=0):
    k('v_lshrrev_b32 v7, 2, v0')
    k('v_and_b32 v8, 3, v0')
    k('v_lshlrev_b32 v9, 4, v0')
    if isinstance(rowbytes_log2_or_mul, int) and rowbytes_log2_or_mul < 32:
        k(f'v_lshlrev_b32 v12, {rowbytes_log2_or_mul}, v7')
        stride = 1 << rowbytes_log2_or_mul
    else:
        stride = rowbytes_log2_or_mul
        k(f's_mov_b32 s7, {stride}')
        k('v_mul_lo_u32 v12, v7, s7')
    k('v_lshl_add_u32 v12, v8, 4, v12')
    k(f'v_add_u32 v12, s{colbyte_sreg}, v12')
    npieces = nrows * 4
    nit = (npieces + 255) // 256
    i = 0
    while i < nit:
        nb = min(8, nit - i)
        for b in range(nb):
            k(f's_mov_b32 s7, {(i+b)*64*stride}')
            k(f'buffer_load_dwordx4 v[{32+4*b}:{35+4*b}], v12, s[{srdreg}:{srdreg+3}], s7 offen')
        for b in range(nb):
            k(f's_waitcnt vmcnt({nb-1-b})')
            last = (i + b + 1) * 256 > npieces
            if last:
                k(f'v_cmp_gt_u32 vcc, {npieces - (i+b)*256}, v0')
                k('s_and_saveexec_b64 s[28:29], vcc')
            o = lds_off + (i+b)*4096
            if o > 65535 - 16:
                k('v_add_u32 v15, 0x10000, v9')
                k(f'ds_write_b128 v15, v[{32+4*b}:{35+4*b}] offset:{o - 65536}')
            else:
                k(f'ds_write_b128 v9, v[{32+4*b}:{35+4*b}] offset:{o}')
            if last:
                k('s_mov_b64 exec, s[28:29]')
        i += nb

def resid_epilogue(k, acc, srd_res, res_off, srd_out, out_off):
    k('''
    v_lshlrev_b32 v6, 10, v10
    v_lshl_add_u32 v6, v11, 3, v6
    s_lshl_b32 s7, s5, 6
    v_add_u32 v6, s7, v6
    ''')
    if res_off: k(f'v_add_u32 v7, 0x{res_off:x}, v6')
    else: k('v_mov_b32 v7, v6')
    if out_off: k(f'v_add_u32 v6, 0x{out_off:x}, v6')
    for q in range(4):
        k(f'buffer_load_dwordx2 v[{32+2*q}:{33+2*q}], v7, s[{srd_res}:{srd_res+3}], 0 offen offset:{q*16}')
    for q in range(4):
        k(f's_waitcnt vmcnt({3-q})')
        for e in range(4):
            src = 32 + 2*q + e//2
            if e % 2 == 0: k(f'v_lshlrev_b32 v2, 16, v{src}')
            else: k(f'v_and_b32 v2, 0xffff0000, v{src}')
            k(f'v_add_f32 v{acc+4*q+e}, v2, v{acc+4*q+e}')
        k(f'v_cvt_pk_bf16_f32 v2, v{acc+4*q}, v{acc+4*q+1}')
        k(f'v_cvt_pk_bf16_f32 v3, v{acc+4*q+2}, v{acc+4*q+3}')
        k(f'buffer_store_dwordx2 v[2:3], v6, s[{srd_out}:{srd_out+3}], 0 offen offset:{q*16}')
        k('s_nop 1')

def gen_k3():
    k = Kern(); AV = 128
    k('''
    s_cmp_ge_u32 s2, 256
    s_cbranch_scc1 L3_end
    s_load_dwordx2 s[8:9], s[0:1], 0
    s_load_dwordx2 s[12:13], s[0:1], 32
    s_load_dwordx2 s[20:21], s[0:1], 88
    ''')
    rowinfo(k)
    k('''
    v_lshlrev_b32 v6, 10, v10
    v_lshl_add_u32 v6, v11, 4, v6
    s_waitcnt lgkmcnt(0)
    ''')
    srd_fin(k, 8, 2048*1024); srd_fin(k, 12, 512*1024); srd_fin(k, 20, WS_BYTES)
    k(f'v_add_u32 v6, 0x{WS_O:x}, v6')
    for s in range(32):
        k(f'buffer_load_dwordx4 v[{AV+4*s}:{AV+4*s+3}], v6, s[20:23], 0 offen offset:{s*32}')
    k('s_lshl_b32 s31, s5, 6')
    btile_load(k, 12, 10, 31, 512)
    traddr(k, 12)
    k('''
    s_waitcnt vmcnt(0) lgkmcnt(0)
    s_barrier
    ''')
    gemm_loop(k, AV, 12, acc=16, bbuf=32, nsteps=32)
    resid_epilogue(k, 16, 8, 0, 20, WS_H)
    k('L3_end:')
    k('s_endpgm')
    return k

def gen_k4():
    k = Kern(); AV = 128
    k('''
    s_cmp_ge_u32 s2, 256
    s_cbranch_scc1 L4_end
    s_load_dwordx2 s[12:13], s[0:1], 48
    s_load_dwordx2 s[16:17], s[0:1], 56
    s_load_dwordx2 s[20:21], s[0:1], 88
    ''')
    rowinfo(k)
    k('''
    v_lshlrev_b32 v6, 10, v10
    v_lshl_add_u32 v6, v11, 4, v6
    s_waitcnt lgkmcnt(0)
    ''')
    srd_fin(k, 12, 512*2752); srd_fin(k, 16, 512*2752); srd_fin(k, 20, WS_BYTES)
    k(f'v_add_u32 v6, 0x{WS_H:x}, v6')
    for s in range(32):
        k(f'buffer_load_dwordx4 v[{AV+4*s}:{AV+4*s+3}], v6, s[20:23], 0 offen offset:{s*32}')
    k('s_waitcnt vmcnt(0)')
    k('s_mov_b32 s30, 0x3f803f80')
    for i in range(4):
        k(f'v_mov_b32 v{2+i}, 0')
        k(f'v_mov_b32 v{6+i}, 0')
    ln_body(k, AV)
    traddr(k, 13)
    k('s_mov_b32 s34, s5')
    k('L4_loop:')
    k('s_lshl_b32 s31, s34, 6')
    btile_load(k, 12, 2752, 31, 512, lds_off=0)
    btile_load(k, 16, 2752, 31, 512, lds_off=32768)
    k('''
    s_waitcnt vmcnt(0) lgkmcnt(0)
    s_barrier
    ''')
    gemm_loop(k, AV, 13, acc=64, bbuf=32, nsteps=32, lds_base=0)
    gemm_loop(k, AV, 13, acc=80, bbuf=48, nsteps=32, lds_base=32768)
    k('s_barrier')
    k('''
    s_mov_b32 s7, 2752
    v_mul_lo_u32 v6, v10, s7
    v_lshl_add_u32 v6, v11, 3, v6
    v_add_u32 v6, s31, v6
    s_mov_b32 s30, 0xbfb8aa3b
    ''')
    k(f'v_add_u32 v6, 0x{WS_G:x}, v6')
    for q in range(4):
        for e in range(4):
            a = 64 + 4*q + e; u = 80 + 4*q + e
            k(f'v_mul_f32 v2, s30, v{a}')
            k('v_exp_f32 v2, v2')
            k('v_add_f32 v2, 1.0, v2')
            k('v_rcp_f32 v2, v2')
            k(f'v_mul_f32 v{a}, v{a}, v2')
            k(f'v_mul_f32 v{a}, v{a}, v{u}')
        k(f'v_cvt_pk_bf16_f32 v2, v{64+4*q}, v{65+4*q}')
        k(f'v_cvt_pk_bf16_f32 v3, v{66+4*q}, v{67+4*q}')
        k(f'buffer_store_dwordx2 v[2:3], v6, s[20:23], 0 offen offset:{q*16}')
        k('s_nop 1')
    k('''
    s_add_u32 s34, s34, 16
    s_cmp_lt_u32 s34, 43
    s_cbranch_scc1 L4_loop
    ''')
    k('L4_end:')
    k('s_endpgm')
    return k

def gen_k5():
    k = Kern(); AV = 128
    k('''
    s_cmp_ge_u32 s2, 256
    s_cbranch_scc1 L5_end
    s_load_dwordx2 s[12:13], s[0:1], 64
    s_load_dwordx2 s[16:17], s[0:1], 72
    s_load_dwordx2 s[20:21], s[0:1], 88
    ''')
    rowinfo(k)
    k('''
    s_mov_b32 s7, 2752
    v_mul_lo_u32 v14, v10, s7
    v_lshl_add_u32 v14, v11, 4, v14
    s_waitcnt lgkmcnt(0)
    ''')
    srd_fin(k, 12, 1376*1024); srd_fin(k, 16, 2048*1024); srd_fin(k, 20, WS_BYTES)
    k(f'v_add_u32 v14, 0x{WS_G:x}, v14')
    k('s_lshl_b32 s31, s5, 6')
    btile_load(k, 12, 10, 31, 1376)
    traddr(k, 12)
    k('v_add_u32 v13, 0x10000, v12')
    k('''
    s_waitcnt vmcnt(0) lgkmcnt(0)
    s_barrier
    ''')
    done = 0
    while done < 86:
        n = min(32, 86 - done)
        for s in range(n):
            k(f'buffer_load_dwordx4 v[{AV+4*s}:{AV+4*s+3}], v14, s[20:23], 0 offen offset:{(done+s)*32}')
        k('s_waitcnt vmcnt(0)')
        gemm_loop5(k, AV, 12, 16, 32, n, done)
        done += n
    resid_epilogue(k, 16, 20, WS_H, 16, 0)
    k('L5_end:')
    k('s_endpgm')
    return k

def gemm_loop5(k, AV, vaddr, acc, bbuf, nsteps, s0):
    W = 4
    def rd(s):
        b = bbuf + 4*(s % W)
        off = (s0 + s) * 1024
        va = vaddr
        if off >= 65536:
            off -= 65536; va = 13
        k(f'ds_read_b64_tr_b16 v[{b}:{b+1}], v{va} offset:{off}')
        k(f'ds_read_b64_tr_b16 v[{b+2}:{b+3}], v{va} offset:{off + 256}')
    for s in range(min(W-1, nsteps)): rd(s)
    for s in range(nsteps):
        if s + W - 1 < nsteps: rd(s + W - 1)
        outstanding = 2 * (min(s + W - 1, nsteps - 1) - s)
        k(f's_waitcnt lgkmcnt({outstanding})')
        b = bbuf + 4*(s % W)
        c = f'v[{acc}:{acc+15}]' if (s0 + s) > 0 else '0'
        k(f'v_mfma_f32_32x32x16_bf16 v[{acc}:{acc+15}], v[{b}:{b+3}], v[{AV+4*s}:{AV+4*s+3}], {c}')

HEADER = '''; generated by gen/gen.py
{launches}
.amdgcn_target "amdgcn-amd-amdhsa--gfx950"
.text
'''
def kd(name, vgpr=256, sgpr=102):
    return f'''.amdhsa_kernel {name}
  .amdhsa_next_free_vgpr {vgpr}
  .amdhsa_next_free_sgpr {sgpr}
  .amdhsa_accum_offset {(vgpr+3)//4*4}
  .amdhsa_group_segment_fixed_size 0
  .amdhsa_kernarg_size 96
  .amdhsa_user_sgpr_count 2
  .amdhsa_user_sgpr_kernarg_segment_ptr 1
  .amdhsa_system_sgpr_workgroup_id_x 1
.end_amdhsa_kernel
'''

def build(kernels, path):
    launches = '\n'.join(f'; @launch kernel={n} grid=({g},1,1) block=({b},1,1) lds={l}' for n, _, g, b, l, _ in kernels)
    s = HEADER.format(launches=launches)
    for n, k, g, b, l, v in kernels:
        s += f'.globl {n}\n.p2align 8\n.type {n},@function\n{n}:\n' + k.finalize() + '\n'
    s += '.section .rodata,"a"\n.p2align 6\n'
    for n, k, g, b, l, v in kernels:
        s += kd(n, v)
    open(path, 'w').write(s)

if __name__ == '__main__':
    ks = [('k1_kernel', gen_k1(), 272, 256, 32768, 256), ('k2_kernel', gen_k2(), 256, 512, 131072+2048, 144), ('k3_kernel', gen_k3(), 256, 256, 32768, 256), ('k4_kernel', gen_k4(), 256, 256, 65536, 256), ('k5_kernel', gen_k5(), 256, 256, 88064, 256)]
    build(ks, sys.argv[1] if len(sys.argv) > 1 else 'out.s')
```
